```python
import torch

def _softmax(x, axis=-1):
    return torch.softmax(x, dim=axis)
def _gelu(x):
    return torch.nn.functional.gelu(x, approximate="tanh")
def _silu(x):
    return torch.nn.functional.silu(x)
def _sigmoid(x):
    return torch.sigmoid(x)
def _layernorm(x, axis=-1, eps=1e-5):
    m = x.mean(dim=axis, keepdim=True)
    v = x.var(dim=axis, keepdim=True, unbiased=False)
    return (x - m) / torch.sqrt(v + eps)
def _scatter_add(tgt, idx, src, axis=0):
    return tgt.clone().index_add_(axis, idx, src)
def _segment_sum(src, seg, n):
    out = torch.zeros((n,) + src.shape[1:], dtype=src.dtype)
    return out.index_add_(0, seg, src)
def _pad(x, pw):
    flat = tuple(v for pair in reversed(pw) for v in pair)
    return torch.nn.functional.pad(x, flat)

kernel_name = 'concat_heads__gqa_block_cached__mha_block_cached__decode'

def setup_inputs():

    _w = (lambda a: (lambda t: t.to(torch.bfloat16) if t.is_floating_point() else t)(torch.as_tensor(a)))
    def _A_setup():
        B, Sq, D = 4, 1, 640
        Hq, Hkv, Sk, Dh = 32, 32, 4096, 192
        assert Hq % Hkv == 0, (Hq, Hkv)
        return {
            "x": _w((lambda *s: torch.randn(*s, dtype=torch.bfloat16) * 0.8)(B, Sq, D)),
            "k_cache": _w((lambda *s: torch.randn(*s, dtype=torch.bfloat16) * 0.8)(B, Hkv, Sk, Dh)),
            "v_cache": _w((lambda *s: torch.randn(*s, dtype=torch.bfloat16) * 0.05)(B, Hkv, Sk, Dh)),
            "wq": _w((lambda *s: torch.randn(*s, dtype=torch.bfloat16) * 0.8)(D, Hq * Dh) * (D ** -0.5)),
            "wo": _w((lambda *s: torch.randn(*s, dtype=torch.bfloat16) * 0.05)(Hq * Dh, D) * ((Hq * Dh) ** -0.5)),
        }
    _A_in = _A_setup()

    def _B_setup():
        B, Sq, D = 4, 1, 640
        H, Sk, Dh = 32, 4096, 192
        return {
            "x": _w((lambda *s: torch.randn(*s, dtype=torch.bfloat16) * 0.8)(B, Sq, D)),
            "k_cache": _w((lambda *s: torch.randn(*s, dtype=torch.bfloat16) * 0.8)(B, H, Sk, Dh)),
            "v_cache": _w((lambda *s: torch.randn(*s, dtype=torch.bfloat16) * 0.05)(B, H, Sk, Dh)),
            "wq": _w((lambda *s: torch.randn(*s, dtype=torch.bfloat16) * 0.8)(D, H * Dh) * (D ** -0.5)),
            "wo": _w((lambda *s: torch.randn(*s, dtype=torch.bfloat16) * 0.05)(H * Dh, D) * ((H * Dh) ** -0.5)),
        }
    _B_in = _B_setup()

    return {
        "A_x": _A_in["x"],
        "A_k_cache": _A_in["k_cache"],
        "A_v_cache": _A_in["v_cache"],
        "A_wq": _A_in["wq"],
        "A_wo": _A_in["wo"],
        "B_x": _B_in["x"],
        "B_k_cache": _B_in["k_cache"],
        "B_v_cache": _B_in["v_cache"],
        "B_wq": _B_in["wq"],
        "B_wo": _B_in["wo"],
    }

def reference(A_x, A_k_cache, A_v_cache, A_wq, A_wo, B_x, B_k_cache, B_v_cache, B_wq, B_wo):
    def _A_ref(x, k_cache, v_cache, wq, wo):
        B, Sq, D = x.shape
        Hq, Dh = 32, 192
        Hkv = k_cache.shape[1]
        rep = Hq // Hkv
        q = (lambda x, *d: x.permute(*d))((x @ wq).reshape(B, Sq, Hq, Dh), 0, 2, 1, 3)
        k = (lambda x, n, axis: torch.repeat_interleave(x, n, dim=axis))(k_cache, rep, axis=1)
        v = (lambda x, n, axis: torch.repeat_interleave(x, n, dim=axis))(v_cache, rep, axis=1)
        scores = torch.einsum("bhqd,bhkd->bhqk", q, k) * (Dh ** -0.5)
        p = _softmax(scores, axis=-1)
        o = torch.einsum("bhqk,bhkd->bhqd", p, v)
        return (lambda x, *d: x.permute(*d))(o, 0, 2, 1, 3).reshape(B, Sq, Hq * Dh) @ wo

    def _B_ref(x, k_cache, v_cache, wq, wo):
        B, Sq, D = x.shape
        H, Dh = 32, 192
        q = (lambda x, *d: x.permute(*d))((x @ wq).reshape(B, Sq, H, Dh), 0, 2, 1, 3)
        scores = torch.einsum("bhqd,bhkd->bhqk", q, k_cache) * (Dh ** -0.5)
        p = _softmax(scores, axis=-1)
        o = torch.einsum("bhqk,bhkd->bhqd", p, v_cache)
        return (lambda x, *d: x.permute(*d))(o, 0, 2, 1, 3).reshape(B, Sq, H * Dh) @ wo

    a = _A_ref(A_x, A_k_cache, A_v_cache, A_wq, A_wo)
    b = _B_ref(B_x, B_k_cache, B_v_cache, B_wq, B_wo)
    return torch.concatenate([a, b], axis=-1)
```

```python
import sys, math, struct
NAME = "concat_heads__gqa_block_cached__mha_block_cached__decode"
PAIR = 1572864
TENS = 201326592
HDR = open("cdna_kernels/%s.s.ref" % NAME).read().split("; Override launch")[0]

def f2u(x): return struct.unpack("<I", struct.pack("<f", x))[0]

class VM:
    def __init__(s, A): s.q = []; s.A = A
    def issue(s, tag):
        s.q.append(tag)
        assert len(s.q) <= 63, "vmcnt overflow"
    def wait(s, tag):
        idx = [i for i, t in enumerate(s.q) if t == tag]
        if not idx: return False
        n = len(s.q) - 1 - idx[-1]
        s.A("  s_waitcnt vmcnt(%d)" % n)
        s.q = s.q[idx[-1] + 1:]
        return True

def gen(NS=6, NPOOL=24, pollat=10, post=9, mixfrom=4, nonp0=12, stamps=0, sset="main", kvpol="nt", wqpol="nt", wopol="",
        wo0=6, wper=2, fl_issue=3, fl_check=5, pm_at=7, nowo=0, nost=0, pkw=4, noq=0, BP=0, lazy=1, burst=1, nofl=0, non=0, ilv=8, NE=0, N7=0, early=1, spread=1, trot=0, tj=0, D0=5, D1=0, DF=0, PUBM=255, th0=60, th1=150, thf=150, p_issue=8, p_take=12, bx=4, init=0, nb=8, late=350, wsc=1, ahead=1, alt=1, prop=1, ta=-50, tb=5, tc=65, o_issue=2, o_take=5, o_late=140, oa=None, ob=None, oc=None, refm=56, wlate=12, cwarm=0, td=0, dmod=2, lin=1, l0=80, lm=14, ish=0, fixw=-1, tsw=0, xb=1, irot=4, ra=-1, rb=0, lmax=12, l4=160, m4=6, rtab=0, rlist=None, own_w=0, orot=0, hm=0, oa_=40, ob_=0, pa=0, pb=0, cyc=1, algn=0, mrun=5, diag=0, npwo=0, worow=1, touch=0, tsplit=1, NW=0, CW=7):
    W, T, TO = 4, 15, 8
    LR, LO = 6 * T, 6 * TO
    NL = 8 * LR + LO
    assert LR % NS == 0 and NPOOL % NS == 0 or True
    L = []; A = L.append
    vm = VM(A)
    XS = 4096
    LB = 4 * XS + 64
    LQ = 2 * LB + 4096
    LTAB = LQ + 2048
    LOWN = LTAB + 64
    LPB = LOWN + 1024
    LCT = LPB + 3072 + 128
    LDS = LCT + 64
    A(HDR.rstrip("\n"))
    A("; Override launch geometry by editing the next line (default: block=256,")
    A("; @launch grid=(256,1,1) block=(256,1,1) lds=%d" % LDS)
    A('.amdgcn_target "amdgcn-amd-amdhsa--gfx950"')
    for ln in (
        "Fused decode attention for both branches, one workgroup (4 waves) per CU.",
        "  id -> member j = (id>>3)&7, head h = 4*(id&7) + (id>>6). The 8 members of a head share its 8",
        "  (branch, batch) pairs: in round r every member handles 480 keys of pair r (three runs of five",
        "  32-key tiles, counted cyclically from a head-dependent start; K first, exact chunk max, then V); member j",
        "  owns pair j, ends with the 256 keys the rounds left out and applies wo.",
        "  Lane l of a load holds 16 B of row l>>3, so scores are dot2 sums over 8 lanes and P*V / x*wq / o*wo",
        "  run on MFMA with a diagonal-masked A operand.",
        "  Hand-offs (q thirds, round partials, per-head outputs) go through d_ws with sc1 accesses and are",
        "  validated by a per-launch tag (nonce) or by counters that workgroup 0 clears before publishing it.",
        "  Round-end clock values of reference workgroups only steer how many loads a workgroup keeps in flight."):
        A("; " + ln)

    A(".text\n.globl %s_kernel\n.p2align 8\n.type %s_kernel,@function\n%s_kernel:" % (NAME, NAME, NAME))
    vT0, vT1, vT2, vT3 = 1, 2, 3, 4
    vKO, vQA, vWQO, vWOO = 5, 6, 7, 8
    vL8 = 7
    vM, vMC, vL = 9, 10, 11
    vMask, vQ, vD, vS, vA = 12, 16, 28, 40, 56
    vN = 98
    vNA = 55
    vRed, vLW, vFl = 96, 97, 100
    vR = 104
    vG0, vG = 64, 156
    vXX = 184
    vFD, vFF, vOP, vMP, vLP, vML = 188, 204, 208, 212, 213, 180
    assert vR + 4 * NS <= vG
    NPRE = NS + NPOOL
    assert vR + 4 * NPRE <= 224 and NPRE <= 3 * T
    NE = NE or NS
    N7 = N7 or NS
    def depth(r): return NE if r == 8 else (N7 if r == 7 else (NW if NW and r in (1, 2) else NS))
    def cap(r): return CW if NW and r in (1, 2) else depth(r)
    def bpool(r): return 0 if depth(r) != NS else BP
    def in_pool(n):
        if n < LR: return NS <= n < NPRE
        r = n // LR
        return depth(r) <= n % LR < depth(r) + bpool(r)
    def lreg(n):
        if n < LR: return vR + 4 * n if n < NPRE else vR + 4 * ((n - NPOOL) % NS)
        r, k = n // LR, n % LR
        return vR + 4 * k if k < depth(r) + bpool(r) else vR + 4 * ((k - bpool(r)) % depth(r))
    assert (LR - NPOOL) % NS == 0 and (LR - BP) % NS == 0 and vR + 4 * (NS + BP) <= vG
    assert (N7 == NS or LR % N7 == 0) and vR + 4 * max(NE, N7) <= vG and NE >= N7 >= NS
    sK, sV, sWQ, sWO, sX, sWS, sOUT, sDBG = 44, 48, 52, 56, 60, 64, 68, 72
    sWave, sB, sH, sBr, sJ = 3, 4, 5, 6, 7
    sKoff, sSpin, sC, sT0, sT1, sT2, sT3, sVoff = 8, 9, 10, 11, 12, 13, 14, 15
    sSeg, sBase, sPlo, sPhi, sWQoff, sWOoff = 42, 43, 76, 77, 78, 79
    sSt, sNo, sRi, sRc, sWO3, sRetry, sLB = 80, 92, 94, 95, 96, 100, 101
    sF = [52, 53, 54, 55, 60, 61, 62, 63]
    sStep, sRot = 17, 16
    sThr, sTm, vPG, vBA = 22, 24, 216, 55
    sStart, sInt, sRho, sPc = 23, 26, 33, 32
    GX = (1 << 21) + (1 << 16)
    CX = (1 << 21) + (1 << 17)
    sQoff, sFlag = 78, 16
    SPIN = 100000
    PART, QX, PX, FX = 65536, 1 << 20, (1 << 20) + (1 << 18), 1 << 21
    assert PX + 256 * 8 * 384 <= FX and QX + 256 * 768 <= PX and PART + 32 * 32 * 768 + 1024 <= QX
    def srd(r): return "s[%d:%d]" % (r, r + 3)
    SETS = {"main": ["start", "qready", "loopend", "stored", "counted", "end"],
            "pro": ["start", "wq19", "pub", "qready", "r0", "r1"],
            "own": ["start", "r6", "r7", "pm", "loopend", "end"],
            "fin": ["start", "counted", "f_iss", "f_first", "f_add", "end"],
            "tail": ["start", "loopend", "merged", "gemv", "stored", "end"]}
    def stamp(name):
        if stamps and name in SETS[sset]:
            i = SETS[sset].index(name)
            A("  s_memrealtime s[%d:%d]" % (sSt + 2 * i, sSt + 2 * i + 1))
            if name not in ("start", "end"): A("  s_waitcnt lgkmcnt(0)")
    lab = [0]
    D0g = D0
    stubs = []
    def newlab():
        lab[0] += 1; return lab[0]
    nlate = sum(1 for n in range(NPRE) if lreg(n) + 3 >= vXX)
    A("  s_cmp_ge_u32 s2, 256\n  s_cbranch_scc1 L_end")
    A("  s_load_dwordx16 s[16:31], s[0:1], 0")
    A("  s_load_dwordx8 s[32:39], s[0:1], 64")
    A("  s_load_dwordx2 s[40:41], s[0:1], 96")
    A("  s_memrealtime s[%d:%d]" % (sNo, sNo + 1))
    if stamps:
        for i in range(12): A("  s_mov_b32 s%d, 0" % (sSt + i))
    stamp("start")
    A("  v_lshrrev_b32 v%d, 6, v0" % vT0)
    A("  v_and_b32 v0, 63, v0")
    A("  v_lshrrev_b32 v%d, 3, v0" % vT1)
    A("  v_readfirstlane_b32 s%d, v%d" % (sWave, vT0))
    A("  v_and_b32 v%d, 7, v0" % vT2)
    A("  v_lshlrev_b32 v%d, 4, v%d" % (vT3, vT2))
    A("  v_mul_u32_u24 v%d, 384, v%d" % (vKO, vT1))
    A("  v_add_u32 v%d, v%d, v%d" % (vKO, vKO, vT3))
    A("  v_mul_u32_u24 v%d, %d, v%d" % (vWQO, 20 * 12288, vT1))
    A("  v_add_u32 v%d, v%d, v%d" % (vWQO, vWQO, vT3))
    A("  v_mul_u32_u24 v%d, %d, v%d" % (vWOO, (1 if worow else 24) * 1280, vT1))
    A("  v_add_u32 v%d, v%d, v%d" % (vWOO, vWOO, vT3))
    A("  v_lshlrev_b32 v%d, 5, v%d" % (vQA, vT2))
    A("  s_bfe_u32 s%d, s2, 0x30003" % sJ)
    if hm == 0: A("  s_and_b32 s%d, s2, 7\n  s_lshl_b32 s%d, s%d, 2\n  s_lshr_b32 s%d, s2, 6\n  s_add_u32 s%d, s%d, s%d" % (sT0, sT0, sT0, sT1, sH, sT0, sT1))
    else: A("  s_and_b32 s%d, s2, 7\n  s_lshr_b32 s%d, s2, 6\n  s_lshl_b32 s%d, s%d, 3\n  s_add_u32 s%d, s%d, s%d" % (sT0, sT1, sT1, sT1, sH, sT0, sT1))
    A("  s_lshr_b32 s%d, s%d, 2\n  s_and_b32 s%d, s%d, 3" % (sBr, sJ, sB, sJ))
    A("  s_mul_i32 s%d, s%d, 320" % (sT1, sWave))
    A("  v_mul_u32_u24 v%d, 40, v%d\n  v_add_u32 v%d, s%d, v%d" % (vT0, vT1, vT0, sT1, vT0))
    A("  s_cmp_ge_u32 s%d, 3\n  s_cselect_b32 s%d, 1, 0\n  s_mul_i32 s%d, s%d, 3\n  s_sub_u32 s%d, s%d, s%d" % (sJ, sT2, sT3, sT2, sT3, sJ, sT3))
    A("  s_mul_i32 s%d, s%d, %d\n  s_mul_i32 s%d, s%d, 384\n  s_add_u32 s%d, s%d, s%d" % (sT0, sWave, 160 * 12288, sT1, sH, sWQoff, sT0, sT1))
    A("  s_lshl_b32 s%d, s%d, 7\n  s_add_u32 s%d, s%d, s%d" % (sT0, sT3, sWQoff, sWQoff, sT0))
    A("  s_lshl_b32 s%d, s%d, 3\n  s_lshl_b32 s%d, s%d, 2\n  s_add_u32 s%d, s%d, s%d\n  s_add_u32 s%d, s%d, s%d" % (
        sT0, sH, sT1, sT2, sT0, sT0, sT1, sT0, sT0, sWave))
    A("  s_mul_i32 s%d, s%d, 768\n  s_lshl_b32 s%d, s%d, 8\n  s_add_u32 s%d, s%d, s%d\n  s_add_u32 s%d, s%d, %d" % (
        sT0, sT0, sT1, sT3, sT0, sT0, sT1, sRetry, sT0, QX))
    A("  s_mul_i32 s%d, s%d, 3\n  s_min_u32 s%d, s%d, 8\n  s_lshl_b32 s%d, s%d, 7" % (sSeg, sWave, sSeg, sSeg, sWOoff, sSeg))
    A("  s_mov_b32 s%d, 0\n  s_mov_b32 s%d, 0\n  s_mov_b32 s%d, 0\n  s_mov_b32 s%d, 0" % (sRi, sRc, sSpin, sLB))
    for r, n in ((sWQ, 7864320), (sK, TENS), (sX, 5120), (sV, TENS)):
        A("  s_mov_b32 s%d, %d\n  s_mov_b32 s%d, 0x20000" % (r + 2, n, r + 3))
    A("  s_cmp_lg_u32 s%d, 0" % sT2)
    A("  s_waitcnt lgkmcnt(0)")
    for (dst, a_, b_) in ((sX, 16, 26), (sWQ, 22, 32)):
        A("  s_cselect_b32 s%d, s%d, s%d\n  s_cselect_b32 s%d, s%d, s%d" % (dst, b_, a_, dst + 1, b_ + 1, a_ + 1))
    if rtab:
        A("  s_lshl_b32 s%d, s%d, 2\n  s_add_u32 s%d, s%d, 0x3f0000\n  s_load_dword s%d, s[40:41], s%d\n  s_waitcnt lgkmcnt(0)" % (sT0, sH, sT0, sT0, sT0, sT0))
        A("  s_lshr_b32 s%d, s%d, 8\n  s_and_b32 s%d, s%d, 255" % (sRho, sT0, sT0, sT0))
    else:
        A("  s_lshr_b32 s%d, s2, 6\n  s_and_b32 s%d, s2, 7" % (sT1, sT3))
        A("  s_mul_i32 s%d, s%d, %d\n  s_mul_i32 s%d, s%d, %d\n  s_add_u32 s%d, s%d, s%d" % (sRho, sT1, pa, sT0, sT3, pb, sRho, sRho, sT0))
        A("  s_mul_i32 s%d, s%d, %d\n  s_mul_i32 s%d, s%d, %d\n  s_add_u32 s%d, s%d, s%d" % (sT0, sT1, oa_, sT1, sT3, ob_, sT0, sT0, sT1))
    if cyc:
        A("  s_add_u32 s%d, s%d, 120\n  s_and_b32 s%d, s%d, 127\n  s_mul_i32 s%d, s%d, 12288" % (sT1, sT0, sT1, sT1, sInt, sT1))
        A("  s_mul_i32 s%d, s%d, %d\n  s_add_u32 s%d, s%d, s%d\n  s_and_b32 s%d, s%d, 127\n  s_mul_i32 s%d, s%d, 12288" % (sT1, sJ, mrun, sT0, sT0, sT1, sT0, sT0, sRot, sT0))
    else:
      A("  s_add_u32 s%d, s%d, s%d" % (sT0, sT0, sJ))
      A("  s_mul_hi_u32 s%d, s%d, 0x2222223\n  s_mul_i32 s%d, s%d, 120\n  s_sub_u32 s%d, s%d, s%d\n  s_mul_i32 s%d, s%d, 12288" % (sT1, sT0, sT1, sT1, sT0, sT0, sT1, sRot, sT0))
    dl = [0]
    def deferred():
        dl[0] += 1
        A("  s_cmp_lg_u32 s%d, 0" % sBr)
        A("  s_cselect_b32 s%d, s34, s24\n  s_cselect_b32 s%d, s35, s25" % (sWO, sWO + 1))
        A("  s_mul_i32 s%d, s%d, 245760" % (sT3, sH))
        A("  s_add_u32 s%d, s%d, s%d\n  s_addc_u32 s%d, s%d, 0" % (sWO, sWO, sT3, sWO + 1, sWO + 1))
        A("  s_mov_b32 s%d, 245760\n  s_mov_b32 s%d, 0x20000" % (sWO + 2, sWO + 3))
        for r, p, n in ((sWS, 40, (1 << 22) if xb == 1 else (1 << 25)), (sOUT, 36, 10240), (sDBG, 38, 256)):
            A("  s_mov_b32 s%d, s%d\n  s_mov_b32 s%d, s%d\n  s_mov_b32 s%d, %d\n  s_mov_b32 s%d, 0x20000" % (r, p, r + 1, p + 1, r + 2, n, r + 3))
        A("  s_mov_b32 s%d, s%d\n  s_mov_b32 s%d, s%d\n  s_mov_b32 s%d, 0x20000" % (sWO3, sWO, sWO3 + 1, sWO + 1, sWO3 + 3))
        A("  s_cmp_lt_u32 s%d, 2\n  s_cselect_b32 s%d, 245760, 0" % (sWave, sWO3 + 2))
        A("  v_mov_b32 v%d, 128" % vNA)
    A("; ---- workgroup 0, wave 0: clear the arrival counters, then publish the launch tag")
    A("  s_mov_b32 s%d, s%d" % (sStart, sNo))
    A("  s_or_b32 s%d, s2, s%d\n  s_cmp_lg_u32 s%d, 0\n  s_cbranch_scc1 L_nononce" % (sT0, sWave, sT0))
    for r, p, n in ((sWS, 40, (1 << 22) if xb == 1 else (1 << 25)), (sDBG, 38, 256)):
        A("  s_mov_b32 s%d, s%d\n  s_mov_b32 s%d, s%d\n  s_mov_b32 s%d, %d\n  s_mov_b32 s%d, 0x20000" % (r, p, r + 1, p + 1, r + 2, n, r + 3))
    A("  v_lshlrev_b32 v%d, 4, v0\n  s_mov_b32 s%d, %d" % (vT3, sT0, CX))
    for i in range(4): A("  v_mov_b32 v%d, 0" % (64 + i))
    for i in range(8):
        A("  buffer_store_dwordx4 v[64:67], v%d, %s, s%d offen offset:%d sc1" % (vT3, srd(sWS), sT0, (i % 4) * 1024))
        if i == 3: A("  s_add_u32 s%d, s%d, 4096" % (sT0, sT0))
    A("  s_or_b32 s%d, s%d, 1\n  v_mov_b32 v%d, s%d\n  v_mov_b32 v%d, s%d\n  v_mov_b32 v%d, 128" % (sNo, sNo, vN, sNo, vN + 1, sNo + 1, vNA))
    A("  s_mov_b64 exec, 1\n  s_waitcnt vmcnt(0)")
    A("  buffer_store_dwordx2 v[%d:%d], v%d, %s, 0 offen sc1" % (vN, vN + 1, vNA, srd(sDBG)))
    A("  s_mov_b64 exec, -1")
    A("L_nononce:")
    if not early: deferred()
    def target():
        u = newlab()
        A("  s_add_u32 s%d, s%d, s%d\n  s_and_b32 s%d, s%d, 7" % (sT0, sRi, sRho, sT0, sT0))
        A("  s_cmp_lt_u32 s%d, 8" % sRi)
        A("  s_cselect_b32 s%d, s%d, s%d" % (sT0, sT0, sJ))
        if cyc: A("  s_cselect_b32 s%d, s%d, s%d" % (sT1, sRot, sInt))
        else: A("  s_cselect_b32 s%d, s%d, %d" % (sT1, sRot, 8 * T * 12288))
        A("  s_cselect_b32 s%d, %d, 1\n  s_mul_i32 s%d, s%d, 12288" % (sStep, 7 * mrun + 1, sStep, sStep))
        A("  s_cselect_b32 s27, %d, 0x7fffffff" % (8 * T * 12288) if False else "  s_cselect_b32 s27, 0, -1")
        A("  s_and_b32 s%d, s%d, 3\n  s_lshl_b32 s%d, s%d, 5\n  s_add_u32 s%d, s%d, s%d\n  s_mul_i32 s%d, s%d, %d" % (
            sT2, sT0, sT2, sT2, sT2, sT2, sH, sT2, sT2, PAIR))
        if algn:
            A("  s_cmp_lt_u32 s%d, 8\n  s_cbranch_scc0 L_al%d" % (sRi, u))
            A("  s_lshr_b32 s%d, s2, 6\n  s_lshl_b32 s%d, s%d, 1\n  s_lshr_b32 s%d, s%d, 2\n  s_add_u32 s%d, s%d, s%d" % (sT0, sT0, sT0, sT2, sRi, sT0, sT0, sT2))
            A("  s_and_b32 s%d, s%d, 3\n  s_lshl_b32 s%d, s%d, 5\n  s_andn2_b32 s%d, s%d, 3\n  s_add_u32 s%d, s%d, s%d" % (sT2, sT0, sT2, sT2, sBase, sH, sT2, sT2, sBase))
            A("  s_and_b32 s%d, s%d, 3\n  s_add_u32 s%d, s%d, s%d\n  s_mul_i32 s%d, s%d, %d" % (sBase, sRi, sT2, sT2, sBase, sT2, sT2, PAIR))
            A("L_al%d:" % u)
        A("  s_mul_i32 s%d, s%d, 3072\n  s_add_u32 s%d, s%d, s%d" % (sBase, sWave, sT2, sT2, sBase))
        A("  s_add_u32 s%d, s%d, s%d\n  s_add_u32 s%d, s%d, %d\n  s_or_b32 s27, s27, s%d" % (sBase, sT2, sT1, sT2, sT2, PAIR if cyc else 8 * T * 12288, sT2))
        A("  s_cmp_ge_u32 s%d, 4" % sT0)
        A("  s_cselect_b32 s%d, s28, s18\n  s_cselect_b32 s%d, s29, s19\n  s_cselect_b32 s%d, s30, s20\n  s_cselect_b32 s%d, s31, s21" % (sK, sK + 1, sV, sV + 1))
        A("  s_mov_b32 s%d, s%d\n  s_add_u32 s%d, s%d, 1" % (sKoff, sBase, sRi, sRi))
    def pos(n):
        if n < 8 * LR: r, k, tt = n // LR, n % LR, T
        else: r, k, tt = 8, n - 8 * LR, TO
        isv = k >= 3 * tt
        kk = k - 3 * tt if isv else k
        return r, isv, kk // 3, kk % 3
    nxt = [0]
    def kv_issue():
        n = nxt[0]; nxt[0] += 1
        r, isv, t, j = pos(n)
        if t == 0 and j == 0:
            if isv: A("  s_mov_b32 s%d, s%d" % (sVoff, sBase))
            elif n > 0: target()
        so = sVoff if isv else sKoff
        g = lreg(n)
        A("  buffer_load_dwordx4 v[%d:%d], v%d, %s, s%d offen offset:%d %s" % (g, g + 3, vKO, srd(sV if isv else sK), so, j * 128, kvpol))
        vm.issue("L%d" % g)
        if j == 2:
            if mrun > 1 and (t + 1) % mrun: A("  s_add_u32 s%d, s%d, 12288" % (so, so))
            else: A("  s_add_u32 s%d, s%d, s%d" % (so, so, sStep))
            A("  s_cmp_ge_u32 s%d, s27\n  s_cselect_b32 s%d, %d, 0\n  s_sub_u32 s%d, s%d, s%d" % (so, sT0, PAIR if cyc else T * 8 * 12288, so, so, sT0))
    if not early: target()
    def red_addr(dst):
        A("  v_lshrrev_b32 v%d, 4, v0\n  v_lshlrev_b32 v%d, 10, v%d" % (dst, dst, dst))
        A("  v_and_b32 v%d, 1, v0\n  v_lshl_add_u32 v%d, v%d, 8, v%d" % (vT3, dst, vT3, dst))
        A("  v_bfe_u32 v%d, v0, 1, 3\n  v_lshl_add_u32 v%d, v%d, 4, v%d" % (vT3, dst, vT3, dst))
    def consts():
        A("  s_mov_b32 s%d, 0x%x" % (sC, f2u(192 ** -0.5 * math.log2(math.e))))
        A("  s_mov_b32 s%d, 0x01000100\n  s_mov_b32 s%d, 0x03020302" % (sPlo, sPhi))
        A("  v_and_b32 v%d, 1, v0" % vT3)
        A("  v_cmp_eq_u32 vcc, 1, v%d" % vT3)
        A("  v_mov_b32 v%d, 0xffff\n  v_mov_b32 v%d, 0xffff0000" % (vQ, vQ + 1))
        A("  v_cndmask_b32 v%d, v%d, v%d, vcc" % (vQ, vQ, vQ + 1))
        A("  v_lshrrev_b32 v%d, 1, v%d" % (vT3, vT2))
        for r in range(4):
            A("  v_cmp_eq_u32 vcc, %d, v%d\n  s_nop 1\n  v_cndmask_b32 v%d, 0, v%d, vcc" % (r, vT3, vMask + r, vQ))
        A("  s_mul_i32 s%d, s%d, %d" % (sT1, sWave, XS))
        A("  v_lshlrev_b32 v%d, 4, v0\n  v_add_u32 v%d, s%d, v%d" % (vLW, vLW, sT1, vLW))
        red_addr(vRed)
    def build_A(dst, src, half):
        A("  v_perm_b32 v%d, v%d, v%d, s%d" % (dst + 3, src, src, sPhi if half else sPlo))
        for r in range(4):
            A("  v_and_b32 v%d, v%d, v%d" % (dst + r, dst + 3, vMask + r))
    def reduce8(addr, dst, scale=None, pre=None):
        st = [64, 68, 72, 76, 80, 84, 88, 92]
        for w in range(4):
            for p in range(2):
                r = st[2 * w + p]
                A("  ds_read_b128 v[%d:%d], v%d offset:%d" % (r, r + 3, addr, w * XS + p * 640))
        if pre: pre()
        for w in range(4):
            A("  s_waitcnt lgkmcnt(%d)" % (6 - 2 * w))
            a_, b_ = st[2 * w], st[2 * w + 1]
            for r in range(4):
                A("  v_add_f32 v%d, v%d, v%d" % (a_ + r, a_ + r, b_ + r))
            for r in range(4):
                if scale is None:
                    if w == 0: continue
                    d = dst + r if w == 3 else st[0] + r
                    A("  v_add_f32 v%d, v%d, v%d" % (d, st[0] + r, a_ + r))
                else:
                    if w == 0: A("  v_mul_f32 v%d, v%d, v%d" % (dst + r, scale + w, a_ + r))
                    else: A("  v_fmac_f32 v%d, v%d, v%d" % (dst + r, scale + w, a_ + r))
    def nonce_issue():
        A("  buffer_load_dwordx2 v[%d:%d], v%d, %s, 0 offen sc1" % (vN, vN + 1, vNA, srd(sDBG))); vm.issue("no")
    def nonce_take(lbl):
        vm.wait("no")
        A("%s:" % lbl)
        A("  v_readfirstlane_b32 s%d, v%d\n  v_readfirstlane_b32 s%d, v%d" % (sNo, vN, sNo + 1, vN + 1))
        A("  s_add_u32 s%d, s%d, 1\n  s_nop 0" % (sSpin, sSpin))
        A("  s_cmp_eq_u32 s%d, 0\n  s_cbranch_scc1 %s_z" % (sNo, lbl))
        A("  s_sub_u32 s%d, s%d, s%d\n  s_add_u32 s%d, s%d, 5000\n  s_cmp_lt_u32 s%d, 10000\n  s_cbranch_scc1 %s_ok" % (sT0, sNo, sStart, sT0, sT0, sT0, lbl))
        A("  s_cmp_gt_u32 s%d, 3000\n  s_cbranch_scc1 %s_ok" % (sSpin, lbl))
        A("%s_z:" % lbl)
        A("  s_cmp_gt_u32 s%d, %d\n  s_cbranch_scc1 %s_ok" % (sSpin, SPIN, lbl))
        A("  buffer_load_dwordx2 v[%d:%d], v%d, %s, 0 offen sc1\n  s_waitcnt vmcnt(0)\n  s_branch %s" % (vN, vN + 1, vNA, srd(sDBG), lbl))
        A("%s_ok:" % lbl)
    A("  s_cmp_ge_u32 s%d, %d\n  s_cbranch_scc1 L_noprod" % (sJ, 0 if noq == 2 else 6))
    def wq_issue(g):
        A("  buffer_load_dwordx4 a[%d:%d], v%d, %s, s%d offen %s" % (4 * g, 4 * g + 3, vWQO, srd(sWQ), sWQoff, wqpol))
        vm.issue("wq%d" % g)
        if g < 19: A("  s_add_u32 s%d, s%d, 12288" % (sWQoff, sWQoff))
    wq_issue(0); wq_issue(1)
    if early: deferred()
    for bb in range(4):
        x = vXX + 10 * bb
        A("  buffer_load_dwordx4 v[%d:%d], v%d, %s, 0 offen offset:%d" % (x, x + 3, vT0, srd(sX), 1280 * bb)); vm.issue("x")
        A("  buffer_load_dwordx4 v[%d:%d], v%d, %s, 0 offen offset:%d" % (x + 4, x + 7, vT0, srd(sX), 1280 * bb + 16)); vm.issue("x")
        A("  buffer_load_dwordx2 v[%d:%d], v%d, %s, 0 offen offset:%d" % (x + 8, x + 9, vT0, srd(sX), 1280 * bb + 32)); vm.issue("x")
    for g in range(2, 14): wq_issue(g)
    if early: target()
    consts()
    for g in range(14, 20): wq_issue(g)
    nonce_issue()
    vm.wait("x")
    vD4 = 28
    budget = min(NPRE - nlate, NPRE - post)
    for g in range(20):
        for bb in range(4):
            a_ = vA + 4 * (bb & 1)
            build_A(a_, vXX + 10 * bb + g // 2, g & 1)
            if bb == 0:
                vm.wait("wq%d" % g); stamp("wq%d" % g)
            A("  s_nop 1")
            c = "0" if g == 0 else "v[%d:%d]" % (vD4 + 4 * bb, vD4 + 4 * bb + 3)
            A("  v_mfma_f32_16x16x32_bf16 v[%d:%d], v[%d:%d], a[%d:%d], %s" % (
                vD4 + 4 * bb, vD4 + 4 * bb + 3, a_, a_ + 3, 4 * g, 4 * g + 3, c))
        if budget > 0 and g >= mixfrom: kv_issue(); budget -= 1
    A("  s_nop 6")
    for bb in range(4):
        A("  ds_write_b128 v%d, v[%d:%d] offset:%d" % (vLW, vD4 + 4 * bb, vD4 + 4 * bb + 3, LB + bb * 1024))
    A("  s_lshl_b32 s%d, s%d, 10\n  s_add_u32 s%d, s%d, %d\n  v_add_u32 v%d, s%d, v%d" % (sT0, sWave, sT0, sT0, LB, vT3, sT0, vRed))
    A("  s_waitcnt lgkmcnt(0)\n  s_barrier")
    reduce8(vT3, 56)
    nonce_take("L_np")
    A("  v_cvt_pk_bf16_f32 v56, v56, v57\n  v_cvt_pk_bf16_f32 v57, v58, v59")
    A("  v_mov_b32 v58, s%d\n  v_mov_b32 v59, s%d" % (sNo, sNo + 1))
    A("  v_lshlrev_b32 v%d, 4, v0" % vT3)
    A("  s_mov_b64 exec, 0xffff")
    A("  buffer_store_dwordx4 v[56:59], v%d, %s, s%d offen sc1" % (vT3, srd(sWS), sRetry))
    A("  s_mov_b64 exec, -1")
    stamp("pub")
    while nxt[0] < NPRE - post: kv_issue()
    assert nxt[0] == NPRE - post
    qprod = [t for t in vm.q if t.startswith("L")]
    A("  s_branch L_join")
    A("L_noprod:")
    vm.q = []; nxt[0] = 0
    if early: target()
    if npwo:
        deferred()
        A("  s_mov_b32 s%d, s%d" % (sT3, sWOoff))
        for i in range(npwo):
            A("  buffer_load_dwordx4 a[%d:%d], v%d, %s, s%d offen offset:%d %s" % (4 * i, 4 * i + 3, vWOO, srd(sWO), sT3, (i % 2) * 128, wopol))
            vm.issue("w0")
            if i % 2 == 1: A("  s_add_u32 s%d, s%d, 1280" % (sT3, sT3))
    for _ in range(min(12, nonp0)): kv_issue()
    if early and not npwo: deferred()
    consts()
    while nxt[0] < min(nonp0, NPRE - post - 4): kv_issue()
    nonce_issue()
    while nxt[0] < NPRE - post: kv_issue()
    if not non: nonce_take("L_nn")
    qn = [t for t in vm.q if t.startswith("L")]
    A("L_join:")
    vm.q = qprod if len(qprod) >= len(qn) else qn
    if len(vm.q) > pollat and not noq:
        A("  s_waitcnt vmcnt(%d)" % pollat); vm.q = vm.q[len(vm.q) - pollat:]
    A("  s_and_b32 s%d, s%d, 7\n  s_lshl_b32 s%d, s%d, 3\n  s_add_u32 s%d, s%d, s%d\n  s_mul_i32 s%d, s%d, 768\n  s_add_u32 s%d, s%d, %d" % (
        sPc, sRho, sT0, sH, sT0, sT0, sPc, sT0, sT0, sQoff, sT0, QX))
    A("  v_lshlrev_b32 v%d, 3, v0" % vL8)
    A("  v_mov_b32 v%d, s%d\n  v_mov_b32 v%d, s%d" % (vFl + 2, sNo, vFl + 3, sNo + 1))
    A("  s_mov_b32 s%d, 0\n  s_mov_b32 s%d, %d" % (sRetry, sThr, init))
    assert not ish
    if PUBM:
        A("  v_mov_b32 v%d, %d\n  v_mov_b32 v%d, %d\n  ds_write_b32 v%d, v%d" % (vT0, LCT, vT3, init, vT0, vT3))
        XO = [4, 77, 154, 239, 35, 118, 201, 172, 8, 73, 146, 227, 47, 122, 213, 184][:nb] if nb > 1 else [bx]
        XO = [0] * own_w + XO[:nb - own_w]
        for i, x in enumerate(XO):
            A("  s_xor_b32 s%d, s2, %d" % (sT0, x))
            if refm: A("  s_andn2_b32 s%d, s%d, %d" % (sT0, sT0, refm))
            A("  s_lshl_b32 s%d, s%d, 7\n  s_add_u32 s%d, s%d, %d\n  v_writelane_b32 v%d, s%d, %d" % (sT0, sT0, sT0, sT0, GX, vBA, sT0, i))
    def setvcc():
        if D0 and D0 < NS: A("  s_mov_b32 vcc_lo, s%d\n  s_mov_b32 vcc_hi, 0" % sThr)
    def qloads(g):
        for i in range(6):
            A("  buffer_load_dwordx4 v[%d:%d], v%d, %s, s%d offen offset:%d sc1" % (g + 4 * i, g + 4 * i + 3, vQA, srd(sWS), sQoff, (i // 2) * 256 + (i % 2) * 16))
    def q_issue(g):
        qloads(g)
        for _ in range(6): vm.issue("q")
    def q_take(g):
        u = newlab()
        vm.wait("q")
        A("  s_branch L_qc%d" % u)
        A("L_qp%d:" % u)
        A("  s_add_u32 s%d, s%d, 1\n  s_cmp_gt_u32 s%d, %d\n  s_cbranch_scc1 L_qk%d" % (sSpin, sSpin, sSpin, SPIN, u))
        qloads(g)
        A("  s_waitcnt vmcnt(0)")
        A("L_qc%d:" % u)
        for i in range(6):
            A("  v_xor_b32 v%d, s%d, v%d\n  v_xor_b32 v%d, s%d, v%d" % (g + 4 * i + 2, sNo, g + 4 * i + 2, g + 4 * i + 3, sNo + 1, g + 4 * i + 3))
        A("  v_or_b32 v%d, v%d, v%d" % (vT3, g + 2, g + 3))
        for i in range(1, 6):
            A("  v_or3_b32 v%d, v%d, v%d, v%d" % (vT3, vT3, g + 4 * i + 2, g + 4 * i + 3))
        if not noq: A("  v_cmp_ne_u32 vcc, 0, v%d\n  s_nop 1\n  s_cbranch_vccnz L_qp%d" % (vT3, u))
        A("L_qk%d:" % u)
        for i in range(6):
            A("  v_mov_b32 v%d, v%d\n  v_mov_b32 v%d, v%d" % (vQ + 2 * i, g + 4 * i, vQ + 2 * i + 1, g + 4 * i + 1))
        setvcc()
    if not noq: q_issue(vG0)
    while nxt[0] < NPRE: kv_issue()
    if not noq: q_take(vG0)
    stamp("qready")
    wo_list = [] if nowo else [(g, j) for g in range(24) for j in range(3)]
    def woreg(g, j):
        i = 3 * g + j
        return "a[%d:%d]" % (4 * i, 4 * i + 3) if i < 64 else "v[%d:%d]" % (224 + 4 * (i - 64), 227 + 4 * (i - 64))
    wo_late = wo_list[len(wo_list) - wlate:] if wlate else []
    if wlate: wo_list = wo_list[:len(wo_list) - wlate]
    def wo_load(g, j, tag):
        A("  buffer_load_dwordx4 %s, v%d, %s, s%d offen offset:%d %s" % (woreg(g, j), vWOO, srd(sWO3 if j == 2 else sWO), sWOoff, j * 128, wopol))
        vm.issue(tag)
        if j == 2: A("  s_add_u32 s%d, s%d, %d" % (sWOoff, sWOoff, 10240 if worow else 1280))
    half = [0]
    def wo_step():
        half[0] += 1
        if touch and touch <= half[0] < touch + 2 * tsplit:
            i = half[0] - touch; per = 64 // tsplit; lo = i * per; cnt = min(per, 100 - lo)
            if cnt > 0:
                A("  s_lshl_b32 s%d, s%d, 2\n  s_add_u32 s%d, s%d, s%d\n  s_mul_i32 s%d, s%d, 12800\n  s_add_u32 s%d, s%d, %d" % (sT0, sB, sT0, sT0, sWave, sT0, sT0, sT0, sT0, lo * 128))
                A("  v_lshlrev_b32 v215, 7, v0")
                m = (1 << cnt) - 1
                A("  s_mov_b32 exec_lo, 0x%x\n  s_mov_b32 exec_hi, 0x%x" % (m & 0xffffffff, m >> 32))
                A("  buffer_load_dword v214, v215, %s, s%d offen\n  s_mov_b64 exec, -1" % (srd(sWO), sT0)); vm.issue("wo")
        if half[0] <= wo0: return
        for _ in range(min(wper, len(wo_list))):
            g, j = wo_list.pop(0)
            A("  buffer_load_dwordx4 %s, v%d, %s, s%d offen offset:%d %s" % (woreg(g, j), vWOO, srd(sWO3 if j == 2 else sWO), sWOoff, j * 128, wopol))
            vm.issue("wo")
            if j == 2: A("  s_add_u32 s%d, s%d, %d" % (sWOoff, sWOoff, 10240 if worow else 1280))
    def refill(n):
        if nxt[0] < NL and not in_pool(n):
            rn, rc_ = nxt[0] // LR, n // LR
            if rn > rc_ and nxt[0] % LR >= depth(rn) + bpool(rn): return False
            assert lreg(nxt[0]) == lreg(n), (n, nxt[0])
            D0 = D0g + cap(rc_) - NS if D0g else 0
            if cap(rc_) < depth(rc_):
                kv = [i for i, tg in enumerate(vm.q) if tg.startswith("L")]
                if len(kv) > cap(rc_) - 1:
                    k_ = kv[len(kv) - cap(rc_)]
                    A("  s_waitcnt vmcnt(%d)" % (len(vm.q) - 1 - k_)); vm.q = vm.q[k_ + 1:]
            if D0:
                kv = [i for i, tg in enumerate(vm.q) if tg.startswith("L")]
                if len(kv) > D0 - 1:
                    u = newlab()
                    if ahead:
                        if n % alt == 0:
                            A("  s_cbranch_vccnz L_ts%d\nL_th%d:" % (u, u))
                            test = ""
                            if lin:
                                rk = [0, 4, 2, 6, 1, 5, 3, 7][n % 8]
                                if rk: test = "  s_cmp_gt_u32 s%d, %d\n  s_cbranch_scc0 L_th%d\n" % (sThr, rk, u)
                            elif prop and n % 4:
                                test = "  s_bitcmp1_b32 s%d, %d\n  s_cbranch_scc0 L_th%d\n" % (sThr, 1 if n % 4 == 2 else 2, u)
                            more = ""
                            if lin and lmax > 8 + rk:
                                more = "  s_cmp_gt_u32 s%d, %d\n  s_cbranch_scc0 L_th%d\n  s_waitcnt vmcnt(%d)\n" % (sThr, 8 + rk, u, len(vm.q) - 1 - kv[len(kv) - D0 + 1])
                            if td and n % dmod == 0:
                                more = "  s_bitcmp1_b32 s%d, 3\n  s_cbranch_scc0 L_th%d\n  s_waitcnt vmcnt(%d)\n" % (sThr, u, len(vm.q) - 1 - kv[len(kv) - D0 + 1])
                            stubs.append("L_ts%d:\n%s  s_waitcnt vmcnt(%d)\n%s  s_branch L_th%d" % (u, test, len(vm.q) - 1 - kv[len(kv) - D0], more, u))
                    else:
                        A("  s_cbranch_vccz L_th%d\n  s_waitcnt vmcnt(%d)\nL_th%d:" % (u, len(vm.q) - 1 - kv[len(kv) - D0], u))
            kv_issue(); return True
        return False
    def wave_max(src, dst):
        A("  v_max_f32_dpp v%d, v%d, v%d row_ror:8 row_mask:0xf bank_mask:0xf" % (vT3, src, src))
        A("  s_nop 0")
        for i in range(4): A("  v_readlane_b32 s%d, v%d, %d" % (sT0 + i, vT3, 16 * i))
        A("  s_nop 0")
        A("  v_mov_b32 v%d, s%d" % (dst, sT0))
        for i in range(1, 4): A("  v_max_f32 v%d, s%d, v%d" % (dst, sT0 + i, dst))
    def flag_store():
        u = newlab()
        A("  s_cmp_lg_u32 s%d, 3\n  s_cbranch_scc1 L_f%d" % (sWave, u))
        A("  v_add_u32 v%d, %d, v%d\n  ds_read_b64 v[%d:%d], v%d" % (vT0, LTAB, vL8, vFl, vFl + 1, vT0))
        A("  s_lshl_b32 s%d, s%d, 3\n  s_add_u32 s%d, s%d, s%d\n  s_lshl_b32 s%d, s%d, 7\n  s_add_u32 s%d, s%d, %d" % (
            sT0, sH, sT0, sT0, sJ, sT0, sT0, sT0, sT0, FX))
        A("  v_lshlrev_b32 v%d, 4, v0\n  s_mov_b64 exec, 0xff\n  s_waitcnt lgkmcnt(0)" % vT3)
        if not nost: A("  buffer_store_dwordx4 v[%d:%d], v%d, %s, s%d offen sc1" % (vFl, vFl + 3, vT3, srd(sWS), sT0))
        A("  s_mov_b64 exec, -1\nL_f%d:" % u)
    def dump():
        A("  v_add_f32_dpp v%d, v%d, v%d row_ror:8 row_mask:0xf bank_mask:0xf" % (vL, vL, vL))
        A("  v_add_u32 v%d, s%d, v%d" % (vT0, sLB, vLW))
        for i in range(4): A("  v_readlane_b32 s%d, v%d, %d" % (sT0 + i, vL, 16 * i))
        A("  s_nop 1")
        for j in range(3):
            A("  ds_write_b128 v%d, v[%d:%d] offset:%d" % (vT0, vD + 4 * j, vD + 4 * j + 3, j * 1024))
        A("  v_mov_b32 v%d, s%d" % (vMC, sT0))
        for i in range(1, 4): A("  v_add_f32 v%d, s%d, v%d" % (vMC, sT0 + i, vMC))
        A("  s_lshl_b32 s%d, s%d, 3\n  s_add_u32 s%d, s%d, s%d\n  v_mov_b32 v%d, s%d" % (sT0, sWave, sT0, sT0, sLB, vT0, sT0))
        A("  v_mov_b32 v%d, v%d\n  v_mov_b32 v%d, v%d" % (vML, vM, vML + 1, vMC))
        A("  ds_write_b64 v%d, v[%d:%d] offset:%d" % (vT0, vML, vML + 1, 4 * XS))
        A("  s_waitcnt lgkmcnt(0)\n  s_barrier")
    def ml_read():
        A("  v_mov_b32 v%d, s%d\n  v_add_u32 v%d, s%d, v%d" % (vT0, sLB, vT3, sLB, vRed))
        A("  ds_read_b128 v[%d:%d], v%d offset:%d\n  ds_read_b128 v[%d:%d], v%d offset:%d" % (
            vML, vML + 3, vT0, 4 * XS, vML + 4, vML + 7, vT0, 4 * XS + 16))
    def flush():
        A("; ---- round end: combine the four waves")
        dump()
        if PUBM:
            u = newlab()
            if fixw >= 0: A("  s_cmp_lg_u32 s%d, %d\n  s_cbranch_scc1 L_p%d" % (sWave, fixw, u))
            else: A("  s_add_u32 s%d, s%d, 2\n  s_and_b32 s%d, s%d, 3\n  s_cmp_lg_u32 s%d, s%d\n  s_cbranch_scc1 L_p%d" % (sT0, sRc, sT0, sT0, sT0, sWave, u))
            A("  s_movk_i32 s%d, 0x%x\n  s_bitcmp1_b32 s%d, s%d\n  s_cbranch_scc0 L_p%d" % (sT0, PUBM, sT0, sRc, u))
            A("  s_memrealtime s[%d:%d]" % (sTm, sTm + 1))
            A("  v_mov_b32 v%d, s%d\n  v_mov_b32 v%d, s%d\n  v_mov_b32 v%d, s%d" % (vPG + 1, sRc, vPG + 2, sNo, vPG + 3, sNo + 1))
            A("  s_lshl_b32 s%d, s2, 7\n  s_add_u32 s%d, s%d, %d\n  v_lshlrev_b32 v%d, 4, v0" % (sT0, sT0, sT0, GX, vT3))
            A("  s_waitcnt lgkmcnt(0)")
            if diag:
                A("  s_lshl_b32 s%d, s2, 4\n  s_lshl_b32 s%d, s%d, 1\n  s_add_u32 s%d, s%d, s%d\n  s_add_u32 s%d, s%d, 1\n  s_lshl_b32 s%d, s%d, 2\n  s_add_u32 s%d, s%d, 0x300000" % (
                    sT1, sT2, sRc, sT1, sT1, sT2, sT1, sT1, sT1, sT1, sT1, sT1))
                A("  v_mov_b32 v214, s%d\n  v_mov_b32 v215, 0\n  s_mov_b64 exec, 1\n  buffer_store_dword v214, v215, %s, s%d offen\n  s_mov_b64 exec, -1" % (sTm, srd(sWS), sT1))
            if refm: A("  s_and_b32 s%d, s2, %d\n  s_cbranch_scc1 L_p%d" % (sT1, refm, u))
            A("  v_mov_b32 v%d, s%d\n  s_mov_b64 exec, 0xff" % (vPG, sTm))
            A("  buffer_store_dwordx4 v[%d:%d], v%d, %s, s%d offen sc1" % (vPG, vPG + 3, vT3, srd(sWS), sT0))
            A("  s_mov_b64 exec, -1\nL_p%d:" % u)
        u = newlab()
        A("  s_and_b32 s%d, s%d, 3\n  s_cmp_lg_u32 s%d, s%d\n  s_cbranch_scc1 L_m%d" % (sT0, sRc, sT0, sWave, u))
        ml_read()
        def scales():
            A("  s_waitcnt lgkmcnt(8)")
            A("  v_max3_f32 v%d, v%d, v%d, v%d\n  v_max_f32 v%d, v%d, v%d" % (vFl, vML, vML + 2, vML + 4, vFl, vFl, vML + 6))
            for w in range(4): A("  v_sub_f32 v%d, v%d, v%d" % (vS + w, vML + 2 * w, vFl))
            for w in range(4): A("  v_mul_f32 v%d, s%d, v%d" % (vS + w, sC, vS + w))
            for w in range(4): A("  v_exp_f32 v%d, v%d" % (vS + w, vS + w))
            A("  s_nop 0")
            A("  v_mul_f32 v%d, v%d, v%d" % (vFl + 1, vS, vML + 1))
            for w in range(1, 4): A("  v_fmac_f32 v%d, v%d, v%d" % (vFl + 1, vS + w, vML + 1 + 2 * w))
        reduce8(vT3, vA, scale=vS, pre=scales)
        A("  s_lshl_b32 s%d, s%d, 3\n  s_add_u32 s%d, s%d, %d\n  v_mov_b32 v%d, s%d" % (sT0, sPc, sT0, sT0, LTAB, vT0, sT0))
        A("  ds_write_b64 v%d, v[%d:%d]" % (vT0, vFl, vFl + 1))
        A("  s_cmp_lg_u32 s%d, s%d\n  s_cbranch_scc1 L_g%d" % (sPc, sJ, u))
        A("  v_lshlrev_b32 v%d, 4, v0\n  ds_write_b128 v%d, v[%d:%d] offset:%d" % (vT0, vT0, vA, vA + 3, LOWN))
        A("  s_branch L_h%d\nL_g%d:" % (u, u))
        A("  v_cvt_pk_bf16_f32 v%d, v%d, v%d\n  v_cvt_pk_bf16_f32 v%d, v%d, v%d" % (vA, vA, vA + 1, vA + 1, vA + 2, vA + 3))
        if burst:
            A("  s_mul_i32 s%d, s%d, 384\n  v_add_u32 v%d, s%d, v%d" % (sT0, sPc, vT0, sT0, vL8))
            A("  s_mov_b32 exec_hi, 0xffff\n  ds_write_b64 v%d, v[%d:%d] offset:%d\n  s_mov_b32 exec_hi, -1" % (vT0, vA, vA + 1, LPB))
        else:
            A("  s_lshl_b32 s%d, s%d, 3\n  s_add_u32 s%d, s%d, s%d\n  s_lshl_b32 s%d, s%d, 3\n  s_add_u32 s%d, s%d, s%d" % (
                sT0, sH, sT0, sT0, sRc, sT0, sT0, sT0, sT0, sJ))
            A("  v_mov_b32_dpp v%d, v%d quad_perm:[1,1,3,3] row_mask:0xf bank_mask:0xf" % (vA + 2, vA))
            A("  v_mov_b32_dpp v%d, v%d quad_perm:[1,1,3,3] row_mask:0xf bank_mask:0xf" % (vA + 3, vA + 1))
            A("  s_mul_i32 s%d, s%d, 384\n  s_add_u32 s%d, s%d, %d" % (sT0, sT0, sT0, sT0, PX))
            A("  s_mov_b32 exec_lo, 0x55555555\n  s_mov_b32 exec_hi, 0x5555")
            if not nost: A("  buffer_store_dwordx4 v[%d:%d], v%d, %s, s%d offen sc1" % (vA, vA + 3, vL8, srd(sWS), sT0))
            A("  s_mov_b64 exec, -1")
        A("L_h%d:\n  s_waitcnt lgkmcnt(0)" % u)
        if burst:
            A("  s_cmp_lg_u32 s%d, 7\n  s_cbranch_scc1 L_m%d" % (sRc, u))
            A("  v_lshlrev_b32 v%d, 4, v0" % vT0)
            for i in range(3):
                A("  ds_read_b128 v[%d:%d], v%d offset:%d" % (64 + 4 * i, 67 + 4 * i, vT0, LPB + 1024 * i))
            A("  s_lshl_b32 s%d, s%d, 3\n  s_add_u32 s%d, s%d, s%d\n  s_mul_i32 s%d, s%d, 3072\n  s_add_u32 s%d, s%d, %d" % (
                sT0, sH, sT0, sT0, sJ, sT0, sT0, sT0, sT0, PX))
            for i in range(3):
                A("  s_waitcnt lgkmcnt(%d)" % (2 - i))
                if not nost: A("  buffer_store_dwordx4 v[%d:%d], v%d, %s, s%d offen offset:%d sc1" % (64 + 4 * i, 67 + 4 * i, vT0, srd(sWS), sT0, 1024 * i))
        A("L_m%d:" % u)
        if xb > 1:
            u2 = newlab(); nx = (xb - 1) * 3 // 4
            A("  s_cmp_lg_u32 s%d, 7\n  s_cbranch_scc1 L_x%d" % (sRc, u2))
            A("  s_lshl_b32 s%d, s2, 2\n  s_add_u32 s%d, s%d, s%d\n  s_mul_i32 s%d, s%d, %d\n  s_add_u32 s%d, s%d, %d\n  v_lshlrev_b32 v%d, 4, v0" % (
                sT0, sT0, sT0, sWave, sT0, sT0, nx * 1024, sT0, sT0, 1 << 22, vT0))
            for i in range(nx):
                A("  buffer_store_dwordx4 v[64:67], v%d, %s, s%d offen sc1\n  s_add_u32 s%d, s%d, 1024" % (vT0, srd(sWS), sT0, sT0, sT0))
            A("L_x%d:" % u2)
        A("  s_xor_b32 s%d, s%d, %d\n  s_add_u32 s%d, s%d, 1" % (sLB, sLB, LB, sRc, sRc))
        A("  s_add_u32 s%d, s%d, 1\n  s_and_b32 s%d, s%d, 7" % (sPc, sPc, sPc, sPc))
    def fl_loads():
        A("  buffer_load_dwordx4 v[%d:%d], v%d, %s, s%d offen sc1" % (vFF, vFF + 3, vT0, srd(sWS), sT0))
    def fl_addr():
        A("  s_lshl_b32 s%d, s%d, 10\n  s_lshl_b32 s%d, s%d, 4\n  s_add_u32 s%d, s%d, s%d\n  s_add_u32 s%d, s%d, %d" % (
            sT0, sH, sT1, sJ, sT0, sT0, sT1, sT0, sT0, FX))
        A("  v_add_u32 v%d, s%d, v%d\n  v_and_b32 v%d, 7, v%d\n  v_lshlrev_b32 v%d, 7, v%d" % (vT0, sJ, vT2, vT0, vT0, vT0, vT0))
    def fl_test():
        A("  v_xor_b32 v%d, s%d, v%d\n  v_xor_b32 v%d, s%d, v%d\n  v_or_b32 v%d, v%d, v%d" % (
            vFF + 2, sNo, vFF + 2, vFF + 3, sNo + 1, vFF + 3, vT3, vFF + 2, vFF + 3))
        A("  v_cmp_ne_u32 vcc, 0, v%d" % vT3)
    def fd_loads():
        if burst:
            A("  s_mul_i32 s%d, s%d, %d\n  s_mul_i32 s%d, s%d, 384\n  s_add_u32 s%d, s%d, s%d\n  s_add_u32 s%d, s%d, %d" % (
                sT0, sH, 8 * 3072, sT1, sJ, sT0, sT0, sT1, sT0, sT0, PX))
        else:
            A("  s_lshl_b32 s%d, s%d, 3\n  s_add_u32 s%d, s%d, s%d\n  s_mul_i32 s%d, s%d, 3072\n  s_add_u32 s%d, s%d, %d" % (
                sT0, sH, sT0, sT0, sJ, sT0, sT0, sT0, sT0, PX))
        A("  s_mov_b32 exec_hi, 0xffff")
        for k in range(1, 8):
            A("  s_add_u32 s%d, s%d, %d\n  s_and_b32 s%d, s%d, 7\n  s_mul_i32 s%d, s%d, %d\n  s_add_u32 s%d, s%d, s%d" % (
                sT1, sJ, k, sT1, sT1, sT1, sT1, 3072 if burst else 384, sT1, sT1, sT0))
            A("  buffer_load_dwordx2 v[%d:%d], v%d, %s, s%d offen sc1" % (vFD + 2 * k, vFD + 2 * k + 1, vL8, srd(sWS), sT1))
        A("  s_mov_b32 exec_hi, -1")
    def premerge():
        A("  v_lshlrev_b32 v%d, 4, v0\n  ds_read_b128 v[%d:%d], v%d offset:%d" % (vT3, vOP, vOP + 3, vT3, LOWN))
        A("  v_mov_b32 v%d, v%d\n  s_nop 1" % (vMP, vFF))
        for dpp in ("quad_perm:[1,0,3,2]", "quad_perm:[2,3,0,1]", "row_half_mirror"):
            A("  v_max_f32_dpp v%d, v%d, v%d %s row_mask:0xf bank_mask:0xf\n  s_nop 1" % (vMP, vMP, vMP, dpp))
        A("  v_sub_f32 v%d, v%d, v%d\n  v_mul_f32 v%d, s%d, v%d\n  v_exp_f32 v%d, v%d\n  s_nop 0" % (vFF, vFF, vMP, vFF, sC, vFF, vFF, vFF))
        A("  v_mul_f32 v%d, v%d, v%d" % (vLP, vFF, vFF + 1))
        for k in range(8): A("  v_readlane_b32 s%d, v%d, %d" % (sF[k], vFF, k))
        for dpp in ("quad_perm:[1,0,3,2]", "quad_perm:[2,3,0,1]", "row_half_mirror"):
            A("  v_add_f32_dpp v%d, v%d, v%d %s row_mask:0xf bank_mask:0xf\n  s_nop 1" % (vLP, vLP, vLP, dpp))
        A("  s_waitcnt lgkmcnt(0)")
        for i in range(4): A("  v_mul_f32 v%d, s%d, v%d" % (vOP + i, sF[0], vOP + i))
        for k in range(1, 8):
            for i in range(2):
                d = vFD + 2 * k + i
                A("  v_lshlrev_b32 v%d, 16, v%d\n  v_and_b32 v%d, 0xffff0000, v%d" % (vT3, d, d, d))
                A("  v_fmac_f32 v%d, s%d, v%d\n  v_fmac_f32 v%d, s%d, v%d" % (vOP + 2 * i, sF[k], vT3, vOP + 2 * i + 1, sF[k], d))
    def do_round(r):
        own = r == 8
        tt = TO if own else T
        n0 = r * LR
        if r > 0: q_take(vG)
        for t in range(tt):
            last = False
            for j in range(3):
                n = n0 + 3 * t + j; g = lreg(n)
                vm.wait("L%d" % g)
                for i in range(4):
                    c = "0" if j == 0 and i == 0 else "v%d" % (vS + t)
                    A("  v_dot2_f32_bf16 v%d, v%d, v%d, %s" % (vS + t, g + i, vQ + 4 * j + i, c))
                last = refill(n)
            A("  s_nop %d" % (1 if last else 2))
            for dpp in ("quad_perm:[1,0,3,2]", "quad_perm:[2,3,0,1]", "row_half_mirror"):
                A("  v_add_f32_dpp v%d, v%d, v%d %s row_mask:0xf bank_mask:0xf" % (vS + t, vS + t, vS + t, dpp))
                if dpp != "row_half_mirror": A("  s_nop 1")
            if t == (depth(8) + bpool(8)) // 3 + 1 and own: flag_store()
            if cwarm and own and t == 0:
                u = newlab()
                A("  s_cmp_lg_u32 s%d, 0\n  s_cbranch_scc1 L_w%d" % (sWave, u))
                A("  s_getpc_b64 s[%d:%d]\nL_pc%d:" % (sT2 - 1, sT2, u))
                A("  s_add_u32 s%d, s%d, L_pmok-L_pc%d\n  s_addc_u32 s%d, s%d, 0" % (sT2 - 1, sT2 - 1, u, sT2, sT2))
                A("  v_lshlrev_b32 v214, 6, v0\n  v_mov_b32 v215, s%d\n  v_add_co_u32 v214, vcc, s%d, v214\n  s_nop 1\n  v_addc_co_u32 v215, vcc, 0, v215, vcc" % (sT2, sT2 - 1))
                A("  global_load_dword v214, v[214:215], off")
                setvcc()
                A("L_w%d:" % u)
            pi_, pt_, lt_ = (o_issue, o_take, o_late) if own else (p_issue, p_take, late)
            th_ = (ta, tb, tc) if (not own or oa is None) else (oa, ob, oc)
            ctl_ = PUBM and r > 0 and (not own or PUBM & 128)
            if ctl_ and t in (pi_, pt_):
                u = newlab()
                if fixw >= 0: A("  s_cmp_lg_u32 s%d, %d\n  s_cbranch_scc1 L_c%d" % (sWave, fixw, u))
                else: A("  s_add_u32 s%d, s%d, 1\n  s_and_b32 s%d, s%d, 3\n  s_cmp_lg_u32 s%d, s%d\n  s_cbranch_scc1 L_c%d" % (sT0, sRc, sT0, sT0, sT0, sWave, u))
                A("  s_movk_i32 s%d, 0x%x\n  s_bitcmp1_b32 s%d, s%d\n  s_cbranch_scc0 L_c%d" % (sT0, PUBM << 1, sT0, sRc, u))
                XO = [4, 77, 154, 239, 35, 118, 201, 172, 8, 73, 146, 227, 47, 122, 213, 184][:nb] if nb > 1 else [bx]
                if t == pi_:
                    A("  s_mov_b64 exec, %d" % ((1 << nb) - 1))
                    A("  buffer_load_dwordx4 v[%d:%d], v%d, %s, 0 offen sc1" % (vPG + 4, vPG + 7, vBA, srd(sWS)))
                    A("  s_mov_b64 exec, -1")
                else:
                    A("  s_sub_u32 s%d, s%d, 1" % (sT1, sRc))
                    A("  v_sub_u32 v%d, s%d, v%d" % (vPG + 4, sTm, vPG + 4))
                    A("  v_xor_b32 v%d, s%d, v%d\n  v_xor_b32 v%d, s%d, v%d\n  v_or_b32 v%d, v%d, v%d" % (
                        vPG + 5, sT1, vPG + 5, vPG + 6, sNo, vPG + 6, vPG + 5, vPG + 5, vPG + 6))
                    A("  v_cmp_eq_u32 vcc, 0, v%d\n  v_mov_b32 v%d, %d\n  s_nop 0\n  v_cndmask_b32 v%d, v%d, v%d, vcc\n  s_nop 0" % (
                        vPG + 5, vPG + 6, -lt_, vPG + 4, vPG + 6, vPG + 4))
                    A("  v_readlane_b32 s%d, v%d, 0" % (sT3, vPG + 4))
                    for i in range(1, nb):
                        A("  v_readlane_b32 s%d, v%d, %d\n  s_nop 0\n  s_add_i32 s%d, s%d, s%d" % (sT0, vPG + 4, i, sT3, sT3, sT0))
                    A("  s_nop 0\n  s_ashr_i32 s%d, s%d, %d" % (sT3, sT3, nb.bit_length() - 1))
                    if lin:
                        if ish:
                            A("  s_add_i32 s%d, s%d, s%d\n  s_ashr_i32 s%d, s%d, %d\n  s_add_i32 s%d, s%d, s%d" % (sInt, sInt, sT3, sT0, sInt, ish, sT3, sT3, sT0))
                        if l4:
                            A("  s_sub_i32 s%d, %d, s%d\n  s_mul_i32 s%d, s%d, %d\n  s_ashr_i32 s%d, s%d, 8" % (sT0, -l4, sT3, sT0, sT0, m4, sT0, sT0))
                            A("  s_max_i32 s%d, s%d, 0\n  s_min_i32 s%d, s%d, %d" % (sT0, sT0, sT0, sT0, lmax - 8))
                        A("  s_sub_i32 s%d, %d, s%d\n  s_mul_i32 s%d, s%d, %d\n  s_ashr_i32 s%d, s%d, 8" % (sT3, l0, sT3, sT3, sT3, lm, sT3, sT3))
                        A("  s_max_i32 s%d, s%d, 0\n  s_min_i32 s%d, s%d, %d" % (sT3, sT3, sThr, sT3, 8 if l4 else lmax))
                        if l4: A("  s_add_u32 s%d, s%d, s%d" % (sThr, sThr, sT0))
                    elif prop:
                        A("  s_cmp_lt_i32 s%d, %d\n  s_cselect_b32 s%d, 1, 0" % (sT3, -th_[0], sThr))
                        A("  s_cmp_lt_i32 s%d, %d\n  s_cselect_b32 s%d, 3, s%d" % (sT3, -th_[1], sThr, sThr))
                        A("  s_cmp_lt_i32 s%d, %d\n  s_cselect_b32 s%d, 7, s%d" % (sT3, -th_[2], sThr, sThr))
                        if td: A("  s_cmp_lt_i32 s%d, %d\n  s_cselect_b32 s%d, 15, s%d" % (sT3, -td, sThr, sThr))
                    elif ahead: A("  s_cmp_lt_i32 s%d, %d\n  s_cselect_b32 s%d, 1, 0" % (sT3, -th0, sThr))
                    else: A("  s_cmp_gt_i32 s%d, %d\n  s_cselect_b32 s%d, 0, 1" % (sT3, th0, sThr))
                    A("  v_mov_b32 v%d, %d\n  v_mov_b32 v%d, s%d\n  ds_write_b32 v%d, v%d" % (vT0, LCT, vT3, sThr, vT0, vT3))
                    setvcc()
                A("L_c%d:" % u)
            if ctl_ and t == pt_ + 2:
                A("  v_mov_b32 v%d, %d\n  ds_read_b32 v%d, v%d\n  s_waitcnt lgkmcnt(0)\n  v_readfirstlane_b32 s%d, v%d" % (vT0, LCT, vT3, vT0, sThr, vT3))
                A("  s_nop 1"); setvcc()
            wo_step()
        if diag and not own:
            u = newlab()
            A("  s_cmp_lg_u32 s%d, 0\n  s_cbranch_scc1 L_d%d\n  s_memrealtime s[%d:%d]" % (sWave, u, sT2 - 1, sT2))
            A("  s_lshl_b32 s%d, s2, 4\n  s_lshl_b32 s%d, s%d, 1\n  s_add_u32 s%d, s%d, s%d\n  s_lshl_b32 s%d, s%d, 2\n  s_add_u32 s%d, s%d, 0x300000\n  s_waitcnt lgkmcnt(0)" % (
                sT0, sT3, sRc, sT0, sT0, sT3, sT0, sT0, sT0, sT0))
            A("  v_mov_b32 v214, s%d\n  v_mov_b32 v215, 0\n  s_mov_b64 exec, 1\n  buffer_store_dword v214, v215, %s, s%d offen\n  s_mov_b64 exec, -1\nL_d%d:" % (sT2 - 1, srd(sWS), sT0, u))
        A("  v_max3_f32 v%d, v%d, v%d, v%d" % (vT0, vS, vS + 1, vS + 2))
        for t in range(3, tt - 1, 2): A("  v_max3_f32 v%d, v%d, v%d, v%d" % (vT0, vT0, vS + t, vS + t + 1))
        if tt % 2 == 0: A("  v_max_f32 v%d, v%d, v%d" % (vT0, vT0, vS + tt - 1))
        A("  s_nop 1")
        wave_max(vT0, vM)
        A("  v_mul_f32 v%d, s%d, v%d" % (vMC, sC, vM))
        if not lazy:
            for t in range(tt): A("  v_fma_f32 v%d, v%d, s%d, -v%d" % (vS + t, vS + t, sC, vMC))
            for t in range(tt): A("  v_exp_f32 v%d, v%d" % (vS + t, vS + t))
            A("  s_nop 0\n  v_add_f32 v%d, v%d, v%d" % (vL, vS, vS + 1))
            for t in range(2, tt): A("  v_add_f32 v%d, v%d, v%d" % (vL, vL, vS + t))
        for t in range(tt):
            a_ = vA + 4 * (t & 1)
            if lazy:
                A("  v_fma_f32 v%d, v%d, s%d, -v%d\n  v_exp_f32 v%d, v%d\n  s_nop 0" % (vS + t, vS + t, sC, vMC, vS + t, vS + t))
            A("  v_cvt_pk_bf16_f32 v%d, v%d, v%d" % (a_ + 3, vS + t, vS + t))
            if lazy:
                if t == 0: A("  v_mov_b32 v%d, v%d" % (vL, vS))
                else: A("  v_add_f32 v%d, v%d, v%d" % (vL, vL, vS + t))
            for i in range(4): A("  v_and_b32 v%d, v%d, v%d" % (a_ + i, a_ + 3, vMask + i))
            for j in range(3):
                n = n0 + 3 * tt + 3 * t + j; g = lreg(n)
                w = vm.wait("L%d" % g)
                if j == 0: A("  s_nop %d" % (0 if w else 1))
                c = "0" if t == 0 else "v[%d:%d]" % (vD + 4 * j, vD + 4 * j + 3)
                A("  v_mfma_f32_16x16x32_bf16 v[%d:%d], v[%d:%d], v[%d:%d], %s" % (vD + 4 * j, vD + 4 * j + 3, a_, a_ + 3, g, g + 3, c))
                refill(n)
            if not own and t == 4:
                A("  s_add_u32 s%d, s%d, 1\n  s_and_b32 s%d, s%d, 7\n  s_cmp_lt_u32 s%d, 7\n  s_cselect_b32 s%d, s%d, s%d" % (sT0, sPc, sT0, sT0, sRc, sT0, sT0, sJ))
                A("  s_lshl_b32 s%d, s%d, 3\n  s_add_u32 s%d, s%d, s%d\n  s_mul_i32 s%d, s%d, 768\n  s_add_u32 s%d, s%d, %d" % (
                    sT1, sH, sT0, sT0, sT1, sT0, sT0, sQoff, sT0, QX))
                q_issue(vG)
            if own and t == fl_issue:
                A("  s_barrier")
                fl_addr(); fl_loads(); vm.issue("fl")
            if own and t == fl_check:
                vm.wait("fl"); fl_test()
                A("  s_nop 1\n  s_cmp_lg_u64 vcc, 0\n  s_cselect_b32 s%d, %d, 0" % (sRetry, 0 if nost else 1))
                setvcc()
                fd_loads()
                for _ in range(7): vm.issue("fd")
                if xb > 1:
                    nx = (xb - 1) * 3 // 4
                    A("  s_xor_b32 s%d, s2, 77\n  s_lshl_b32 s%d, s%d, 2\n  s_add_u32 s%d, s%d, s%d\n  s_mul_i32 s%d, s%d, %d\n  s_add_u32 s%d, s%d, %d\n  v_lshlrev_b32 v%d, 4, v0" % (
                        sT0, sT0, sT0, sT0, sT0, sWave, sT0, sT0, nx * 1024, sT0, sT0, 1 << 22, vT0))
                    for i in range(nx):
                        A("  buffer_load_dwordx4 v[%d:%d], v%d, %s, s%d offen sc1\n  s_add_u32 s%d, s%d, 1024" % (128 + 4 * (i % 6), 131 + 4 * (i % 6), vT0, srd(sWS), sT0, sT0, sT0))
                        vm.issue("fd")
            if own and nxt[0] == NL and t >= fl_check:
                while wo_late:
                    g_, j_ = wo_late.pop(0); wo_load(g_, j_, "wl%d" % g_)
            if own and t == pm_at:
                vm.wait("fd"); premerge(); stamp("pm")
            if not own: wo_step()
        if not own:
            while nxt[0] < (r + 1) * LR + depth(r + 1) + bpool(r + 1): kv_issue()
            if nofl: A("  s_add_u32 s%d, s%d, 1" % (sRc, sRc))
            else: flush()
            stamp("r%d" % r)
    r = 0
    while True:
        st0 = list(vm.q)
        do_round(r); r += 1
        if not wo_list and "wo" not in vm.q and r >= (3 if NW else 1) and nxt[0] >= NPRE + LR: break
    rl = 8 if (NE == NS and N7 == NS) else (7 if N7 == NS else 6)
    assert r < rl
    q0 = list(vm.q); n0_ = nxt[0]
    A("L_loop:")
    do_round(r)
    assert vm.q == q0
    A("  s_cmp_lt_u32 s%d, %d\n  s_cbranch_scc1 L_loop" % (sRc, rl))
    nxt[0] = n0_ + (rl - r) * LR
    for r_ in range(rl, 8): do_round(r_)
    do_round(8)
    assert all(t_.startswith('wl') for t_ in vm.q) and nxt[0] == NL and not wo_late
    A("  s_cmp_eq_u32 s%d, 0\n  s_cbranch_scc1 L_pmok" % sRetry)
    A("L_pmspin:")
    A("  s_add_u32 s%d, s%d, 1\n  s_cmp_gt_u32 s%d, %d\n  s_cbranch_scc1 L_pmgo" % (sSpin, sSpin, sSpin, SPIN))
    fl_addr(); fl_loads()
    A("  s_waitcnt vmcnt(0)")
    fl_test()
    A("  s_nop 1\n  s_cbranch_vccnz L_pmspin")
    A("L_pmgo:")
    fd_loads()
    A("  s_waitcnt vmcnt(0)")
    premerge()
    A("L_pmok:")
    stamp("loopend")
    dump()
    ml_read()
    def scales5():
        A("  s_waitcnt lgkmcnt(8)")
        A("  v_max3_f32 v%d, v%d, v%d, v%d\n  v_max3_f32 v%d, v%d, v%d, v%d" % (vM, vML, vML + 2, vML + 4, vM, vM, vML + 6, vMP))
        for w in range(4): A("  v_sub_f32 v%d, v%d, v%d" % (vS + w, vML + 2 * w, vM))
        A("  v_sub_f32 v%d, v%d, v%d" % (vS + 4, vMP, vM))
        for w in range(5): A("  v_mul_f32 v%d, s%d, v%d" % (vS + w, sC, vS + w))
        for w in range(5): A("  v_exp_f32 v%d, v%d" % (vS + w, vS + w))
        A("  s_nop 0")
        A("  v_mul_f32 v%d, v%d, v%d" % (vL, vS + 4, vLP))
        for w in range(4): A("  v_fmac_f32 v%d, v%d, v%d" % (vL, vS + w, vML + 1 + 2 * w))
        A("  v_rcp_f32 v%d, v%d\n  s_nop 0" % (vL, vL))
        for w in range(5): A("  v_mul_f32 v%d, v%d, v%d" % (vS + w, vS + w, vL))
    reduce8(vT3, vA, scale=vS, pre=scales5)
    for i in range(4): A("  v_fmac_f32 v%d, v%d, v%d" % (vA + i, vS + 4, vOP + i))
    A("  v_cvt_pk_bf16_f32 v%d, v%d, v%d\n  v_cvt_pk_bf16_f32 v%d, v%d, v%d" % (vA, vA, vA + 1, vA + 1, vA + 2, vA + 3))
    A("  s_lshl_b32 s%d, s%d, 9\n  s_add_u32 s%d, s%d, %d" % (sT0, sWave, sT0, sT0, LQ))
    if worow:
        A("  v_and_b32 v%d, 1, v0\n  v_mul_u32_u24 v%d, 192, v%d\n  v_and_b32 v%d, 62, v0\n  v_add3_u32 v%d, v%d, v%d, s%d" % (vT0, vT0, vT0, vT3, vT0, vT0, vT3, sT0))
        A("  s_mov_b32 exec_hi, 0xffff")
        A("  ds_write_b16 v%d, v%d\n  ds_write_b16_d16_hi v%d, v%d offset:48" % (vT0, vA, vT0, vA))
        A("  ds_write_b16 v%d, v%d offset:96\n  ds_write_b16_d16_hi v%d, v%d offset:144" % (vT0, vA + 1, vT0, vA + 1))
        A("  s_mov_b32 exec_hi, -1")
    else:
        A("  v_add_u32 v%d, s%d, v%d" % (vT0, sT0, vL8))
        A("  ds_write_b64 v%d, v[%d:%d]" % (vT0, vA, vA + 1))
    A("  v_mul_u32_u24 v%d, 48, v%d\n  v_add_u32 v%d, s%d, v%d" % (vT0, vT1, vT0, sT0, vT0))
    A("  s_waitcnt lgkmcnt(0)")
    vO = 64
    for i in range(3):
        A("  ds_read_b128 v[%d:%d], v%d offset:%d" % (vO + 4 * i, vO + 4 * i + 3, vT0, 16 * i))
    A("  s_lshl_b32 s%d, s%d, 2\n  s_add_u32 s%d, s%d, s%d" % (sT2, sJ, sT2, sT2, sWave))
    A("  s_mul_i32 s%d, s%d, %d\n  s_add_u32 s%d, s%d, %d" % (sT3, sT2, 32 * 768, sT3, sT3, PART))
    A("  s_mul_i32 s%d, s%d, 768\n  s_add_u32 s%d, s%d, s%d" % (sT1, sH, sT1, sT1, sT3))
    A("  v_lshrrev_b32 v%d, 5, v0\n  v_lshlrev_b32 v%d, 8, v%d" % (vT0, vT0, vT0))
    A("  v_lshl_add_u32 v%d, v%d, 5, v%d" % (vT0, vT2, vT0))
    A("  v_and_b32 v%d, 16, v0\n  v_add_u32 v%d, v%d, v%d" % (vT3, vT0, vT0, vT3))
    if wsc:
        A("  s_lshl_b32 s%d, s%d, 8\n  s_add_u32 s%d, s%d, %d\n  v_mov_b32 v%d, s%d\n  v_mov_b32 v%d, 1" % (sT2, sT2, sT2, sT2, CX, vS + 1, sT2, vS + 2))
    elif spread:
        A("  s_lshl_b32 s%d, s%d, 3\n  s_and_b32 s%d, s%d, 1\n  s_lshl_b32 s%d, s%d, 2\n  s_add_u32 s%d, s%d, s%d" % (sT2, sJ, sT0, sWave, sT0, sT0, sT2, sT2, sT0))
        A("  s_lshr_b32 s%d, s%d, 1\n  s_mul_i32 s%d, s%d, 192\n  s_add_u32 s%d, s%d, s%d" % (sT0, sWave, sT0, sT0, sT2, sT2, sT0))
        A("  v_mov_b32 v%d, s%d\n  v_mov_b32 v%d, 1" % (vS + 1, sT2, vS + 2))
    else:
        A("  s_lshl_b32 s%d, s%d, 2\n  v_mov_b32 v%d, s%d\n  v_mov_b32 v%d, 1" % (sT2, sT2, vS + 1, sT2, vS + 2))
    A("  v_lshlrev_b32 v%d, 4, v0" % vS)
    A("  s_waitcnt lgkmcnt(0)")
    stamp("merged")
    A("; ---- o * wo, three (two) 64-column segments per wave")
    vE = 76
    build_A(vA, vO, 0)
    for g in range(24):
        a_ = vA + 4 * (g & 1)
        if g == 0: A("  s_nop 1")
        vm.wait("wl%d" % g)
        for j in range(3):
            c = "0" if g == 0 else "v[%d:%d]" % (vE + 4 * j, vE + 4 * j + 3)
            A("  v_mfma_f32_16x16x32_bf16 v[%d:%d], v[%d:%d], %s, %s" % (vE + 4 * j, vE + 4 * j + 3, a_, a_ + 3, woreg(g, j), c))
            if j == 0 and g < 23: build_A(vA + 4 * ((g + 1) & 1), vO + (g + 1) // 2, (g + 1) & 1)
    stamp("gemv")
    A("  s_nop 7")
    for r_ in range(4): A("  v_permlane32_swap_b32 v%d, v%d" % (vE + r_, vE + 4 + r_))
    for r_ in range(4): A("  v_permlane32_swap_b32 v%d, v%d" % (vE + 8 + r_, vE + 12 + r_))
    for r_ in range(4):
        A("  v_add_f32_dpp v%d, v%d, v%d row_ror:8 row_mask:0xf bank_mask:0xf" % (vE + r_, vE + 4 + r_, vE + r_))
    for r_ in range(4):
        A("  v_add_f32_dpp v%d, v%d, v%d row_ror:8 row_mask:0xf bank_mask:0xf" % (vE + 8 + r_, vE + 12 + r_, vE + 8 + r_))
    A("  s_mov_b32 exec_lo, 0x00ff00ff\n  s_mov_b32 exec_hi, 0x00ff00ff")
    A("  buffer_store_dwordx4 v[%d:%d], v%d, %s, s%d offen sc1" % (vE, vE + 3, vT0, srd(sWS), sT1))
    A("  s_mov_b32 exec_hi, 0")
    A("  s_cmp_ge_u32 s%d, 2\n  s_cbranch_scc1 L_no3" % sWave)
    A("  buffer_store_dwordx4 v[%d:%d], v%d, %s, s%d offen offset:512 sc1" % (vE + 8, vE + 11, vT0, srd(sWS), sT1))
    A("L_no3:")
    stamp("stored")
    A("  s_mov_b32 exec_lo, 1")
    A("  s_waitcnt vmcnt(0)")
    A("  buffer_atomic_add v%d, v%d, %s, 0 offen sc0 sc1" % (vS + 2, vS + 1, srd(sWS if wsc else sDBG)))
    A("  s_waitcnt vmcnt(0)")
    A("  v_readfirstlane_b32 s%d, v%d" % (sT0, vS + 2))
    A("  s_mov_b64 exec, -1")
    stamp("counted")
    A("  s_cmp_lg_u32 s%d, 31\n  s_cbranch_scc1 L_done" % sT0)
    vZ = 96
    A("  s_cmp_lt_u32 s%d, 2\n  s_cselect_b32 exec_hi, 0xffff, 0" % sWave)
    for hh in range(32):
        g = vZ + 4 * hh
        A("  buffer_load_dwordx4 v[%d:%d], v%d, %s, s%d offen offset:%d sc1" % (g, g + 3, vS, srd(sWS), sT3, (hh % 4) * 768))
        if hh % 4 == 3: A("  s_add_u32 s%d, s%d, 3072" % (sT3, sT3))
    stamp("f_iss")
    A("  s_mul_i32 s%d, s%d, 2560\n  s_mul_i32 s%d, s%d, 1280\n  s_add_u32 s%d, s%d, s%d" % (sT0, sB, sT1, sBr, sT0, sT0, sT1))
    A("  s_lshl_b32 s%d, s%d, 7\n  s_add_u32 s%d, s%d, s%d" % (sT1, sSeg, sT0, sT0, sT1))
    def pk(d, x):
        for r_ in (0, 2): A("  v_pk_add_f32 v[%d:%d], v[%d:%d], v[%d:%d]" % (d + r_, d + r_ + 1, d + r_, d + r_ + 1, x + r_, x + r_ + 1))
    for hh in range(4, 32):
        if hh % pkw == 0: A("  s_waitcnt vmcnt(%d)" % (32 - pkw - hh))
        if hh == 4: stamp("f_first")
        pk(vZ + 4 * (hh % 4), vZ + 4 * hh)
    pk(vZ, vZ + 4); pk(vZ + 8, vZ + 12); pk(vZ, vZ + 8)
    A("  v_cvt_pk_bf16_f32 v%d, v%d, v%d\n  v_cvt_pk_bf16_f32 v%d, v%d, v%d" % (vZ, vZ, vZ + 1, vZ + 1, vZ + 2, vZ + 3))
    stamp("f_add")
    A("  buffer_store_dwordx2 v[%d:%d], v%d, %s, s%d offen" % (vZ, vZ + 1, vL8, srd(sOUT), sT0))
    A("L_done:")
    if stamps:
        A("  s_mov_b64 exec, -1\n  s_waitcnt vmcnt(0)")
        stamp("end")
        A("  s_waitcnt lgkmcnt(0)")
        for i in range(12): A("  v_mov_b32 v%d, s%d" % (64 + i, sSt + i))
        A("  s_lshl_b32 s%d, s%d, 16\n  s_add_u32 s%d, s%d, s%d" % (sT1, sRetry, sT1, sT1, sSpin))
        A("  s_getreg_b32 s%d, hwreg(HW_REG_XCC_ID)\n  v_mov_b32 v76, s%d\n  v_mov_b32 v77, 0\n  v_mov_b32 v78, s%d\n  v_mov_b32 v79, 0" % (sT0, sT0, sT1))
        A("  s_lshl_b32 s%d, s2, 2\n  s_add_u32 s%d, s%d, s%d\n  s_lshl_b32 s%d, s%d, 6\n  v_mov_b32 v%d, s%d\n  s_mov_b64 exec, 1" % (sT0, sT0, sT0, sWave, sT0, sT0, vT0, sT0))
        for i in range(4):
            A("  buffer_store_dwordx4 v[%d:%d], v%d, %s, 0 offen offset:%d" % (64 + 4 * i, 67 + 4 * i, vT0, srd(sWS), 16 * i))
    A("L_end:\n  s_endpgm")
    A("; ---- reduced load depth while this workgroup is ahead of the references")
    for st_ in stubs: A(st_)
    A('.section .rodata,"a"\n.p2align 6\n.amdhsa_kernel %s_kernel' % NAME)
    A("  .amdhsa_next_free_vgpr 512\n  .amdhsa_next_free_sgpr 102\n  .amdhsa_accum_offset 256")
    A("  .amdhsa_group_segment_fixed_size 0\n  .amdhsa_kernarg_size 104\n  .amdhsa_user_sgpr_count 2")
    A("  .amdhsa_user_sgpr_kernarg_segment_ptr 1\n  .amdhsa_system_sgpr_workgroup_id_x 1\n.end_amdhsa_kernel")
    return "\n".join(L) + "\n"

if __name__ == "__main__":
    names = []
    for spec in sys.argv[1:]:
        kw = {}
        for kv in spec.split(","):
            if not kv: continue
            k, v = kv.split("=")
            kw[k] = v[1:] if k == "rlist" else int(v) if v.lstrip("-").isdigit() else v.replace("none", "").replace("+", " ")
        fn = "k15_" + spec.replace(",", "_").replace("=", "") + ".s"
        open(fn, "w").write(gen(**kw)); names.append(fn)
    print(" ".join(names))
```
